```python
import torch

def _softmax(x, axis=-1):
    return torch.softmax(x, dim=axis)
def _gelu(x):
    return torch.nn.functional.gelu(x, approximate="tanh")
def _silu(x):
    return torch.nn.functional.silu(x)
def _sigmoid(x):
    return torch.sigmoid(x)
def _layernorm(x, axis=-1, eps=1e-5):
    m = x.mean(dim=axis, keepdim=True)
    v = x.var(dim=axis, keepdim=True, unbiased=False)
    return (x - m) / torch.sqrt(v + eps)
def _scatter_add(tgt, idx, src, axis=0):
    return tgt.clone().index_add_(axis, idx, src)
def _segment_sum(src, seg, n):
    out = torch.zeros((n,) + src.shape[1:], dtype=src.dtype)
    return out.index_add_(0, seg, src)
def _pad(x, pw):
    flat = tuple(v for pair in reversed(pw) for v in pair)
    return torch.nn.functional.pad(x, flat)

kernel_name = 'concat_heads__gqa_block_cached__gqa_block_cached__near_ridge'

def setup_inputs():

    _w = (lambda a: (lambda t: t.to(torch.bfloat16) if t.is_floating_point() else t)(torch.as_tensor(a)))
    def _A_setup():
        B, Sq, D = 16, 48, 640
        Hq, Hkv, Sk, Dh = 32, 32, 48, 192
        assert Hq % Hkv == 0, (Hq, Hkv)
        return {
            "x": _w((lambda *s: torch.randn(*s, dtype=torch.bfloat16) * 0.8)(B, Sq, D)),
            "k_cache": _w((lambda *s: torch.randn(*s, dtype=torch.bfloat16) * 0.8)(B, Hkv, Sk, Dh)),
            "v_cache": _w((lambda *s: torch.randn(*s, dtype=torch.bfloat16) * 0.05)(B, Hkv, Sk, Dh)),
            "wq": _w((lambda *s: torch.randn(*s, dtype=torch.bfloat16) * 0.8)(D, Hq * Dh) * (D ** -0.5)),
            "wo": _w((lambda *s: torch.randn(*s, dtype=torch.bfloat16) * 0.05)(Hq * Dh, D) * ((Hq * Dh) ** -0.5)),
        }
    _A_in = _A_setup()

    def _B_setup():
        B, Sq, D = 16, 48, 640
        Hq, Hkv, Sk, Dh = 32, 32, 48, 192
        assert Hq % Hkv == 0, (Hq, Hkv)
        return {
            "x": _w((lambda *s: torch.randn(*s, dtype=torch.bfloat16) * 0.8)(B, Sq, D)),
            "k_cache": _w((lambda *s: torch.randn(*s, dtype=torch.bfloat16) * 0.8)(B, Hkv, Sk, Dh)),
            "v_cache": _w((lambda *s: torch.randn(*s, dtype=torch.bfloat16) * 0.05)(B, Hkv, Sk, Dh)),
            "wq": _w((lambda *s: torch.randn(*s, dtype=torch.bfloat16) * 0.8)(D, Hq * Dh) * (D ** -0.5)),
            "wo": _w((lambda *s: torch.randn(*s, dtype=torch.bfloat16) * 0.05)(Hq * Dh, D) * ((Hq * Dh) ** -0.5)),
        }
    _B_in = _B_setup()

    return {
        "A_x": _A_in["x"],
        "A_k_cache": _A_in["k_cache"],
        "A_v_cache": _A_in["v_cache"],
        "A_wq": _A_in["wq"],
        "A_wo": _A_in["wo"],
        "B_x": _B_in["x"],
        "B_k_cache": _B_in["k_cache"],
        "B_v_cache": _B_in["v_cache"],
        "B_wq": _B_in["wq"],
        "B_wo": _B_in["wo"],
    }

def reference(A_x, A_k_cache, A_v_cache, A_wq, A_wo, B_x, B_k_cache, B_v_cache, B_wq, B_wo):
    def _A_ref(x, k_cache, v_cache, wq, wo):
        B, Sq, D = x.shape
        Hq, Dh = 32, 192
        Hkv = k_cache.shape[1]
        rep = Hq // Hkv
        q = (lambda x, *d: x.permute(*d))((x @ wq).reshape(B, Sq, Hq, Dh), 0, 2, 1, 3)
        k = (lambda x, n, axis: torch.repeat_interleave(x, n, dim=axis))(k_cache, rep, axis=1)
        v = (lambda x, n, axis: torch.repeat_interleave(x, n, dim=axis))(v_cache, rep, axis=1)
        scores = torch.einsum("bhqd,bhkd->bhqk", q, k) * (Dh ** -0.5)
        p = _softmax(scores, axis=-1)
        o = torch.einsum("bhqk,bhkd->bhqd", p, v)
        return (lambda x, *d: x.permute(*d))(o, 0, 2, 1, 3).reshape(B, Sq, Hq * Dh) @ wo

    def _B_ref(x, k_cache, v_cache, wq, wo):
        B, Sq, D = x.shape
        Hq, Dh = 32, 192
        Hkv = k_cache.shape[1]
        rep = Hq // Hkv
        q = (lambda x, *d: x.permute(*d))((x @ wq).reshape(B, Sq, Hq, Dh), 0, 2, 1, 3)
        k = (lambda x, n, axis: torch.repeat_interleave(x, n, dim=axis))(k_cache, rep, axis=1)
        v = (lambda x, n, axis: torch.repeat_interleave(x, n, dim=axis))(v_cache, rep, axis=1)
        scores = torch.einsum("bhqd,bhkd->bhqk", q, k) * (Dh ** -0.5)
        p = _softmax(scores, axis=-1)
        o = torch.einsum("bhqk,bhkd->bhqd", p, v)
        return (lambda x, *d: x.permute(*d))(o, 0, 2, 1, 3).reshape(B, Sq, Hq * Dh) @ wo

    a = _A_ref(A_x, A_k_cache, A_v_cache, A_wq, A_wo)
    b = _B_ref(B_x, B_k_cache, B_v_cache, B_wq, B_wo)
    return torch.concatenate([a, b], axis=-1)
```

```python
def v(n, cnt=1):
    return f"v{n}" if cnt == 1 else f"v[{n}:{n + cnt - 1}]"


def s(n, cnt=1):
    return f"s{n}" if cnt == 1 else f"s[{n}:{n + cnt - 1}]"


class Asm:
    def __init__(self):
        self.lines = []
        self._uid = 0

    def __call__(self, text):
        for ln in text.split("\n"):
            ln = ln.strip()
            if ln:
                self.lines.append("    " + ln)

    def label(self, name):
        self.lines.append(name + ":")

    def comment(self, text):
        self.lines.append("    ; " + text)

    def uid(self, prefix):
        self._uid += 1
        return f"{prefix}_{self._uid}"

    def raw(self, text):
        self.lines.append(text)

    def text(self):
        return "\n".join(self.lines) + "\n"


class LdsQueue:
    def __init__(self, asm):
        self.a = asm
        self.q = []

    def issue(self, text, tag=None):
        self.a(text)
        self.q.append(tag)

    def need(self, *tags):
        last = -1
        for i, t in enumerate(self.q):
            if t in tags:
                last = i
        if last < 0:
            return
        n = min(len(self.q) - 1 - last, 15)
        self.a(f"s_waitcnt lgkmcnt({n})")
        self.q = self.q[len(self.q) - n:]

    def drain(self, force=False):
        if self.q or force:
            self.a("s_waitcnt lgkmcnt(0)")
        self.q = []


class VmQueue:
    def __init__(self, asm):
        self.a = asm
        self.q = []

    def issue(self, text, tag=None):
        self.a(text)
        self.q.append(tag)
        assert len(self.q) <= 63, "vmcnt overflow"

    def need(self, *tags):
        last = -1
        for i, t in enumerate(self.q):
            if t in tags:
                last = i
        if last < 0:
            return
        n = len(self.q) - 1 - last
        self.a(f"s_waitcnt vmcnt({n})")
        self.q = self.q[last + 1:]

    def drain(self, force=False):
        if self.q or force:
            self.a("s_waitcnt vmcnt(0)")
        self.q = []


def interleave(main, fill, every=1, start=0, per=1):
    out = []
    fi = 0
    for i, m in enumerate(main):
        out.append(m)
        if i >= start and (i - start) % every == 0:
            for _ in range(per):
                if fi < len(fill):
                    out.append(fill[fi])
                    fi += 1
    out.extend(fill[fi:])
    return out


def descriptor(name, vgpr=256, sgpr=102, accum=256):
    return f""".amdhsa_kernel {name}
  .amdhsa_next_free_vgpr {vgpr}
  .amdhsa_next_free_sgpr {sgpr}
  .amdhsa_accum_offset {accum}
  .amdhsa_group_segment_fixed_size 0
  .amdhsa_kernarg_size 104
  .amdhsa_user_sgpr_count 2
  .amdhsa_user_sgpr_kernarg_segment_ptr 1
  .amdhsa_system_sgpr_workgroup_id_x 1
  .amdhsa_float_denorm_mode_32 3
.end_amdhsa_kernel
"""
```

```python
import sys, math, struct
from asmlib import *

NAME = "concat_heads__gqa_block_cached__gqa_block_cached__near_ridge"
OPT = dict(stamps=0, nt_kv="", nt_wq="", nt_x="", nt_wo="", o_store="", part_store="", kper=3, R2=4, k1only=0)
for a in sys.argv[2:]:
    k, val = a.split("=")
    OPT[k] = int(val) if val.lstrip("-").isdigit() else val.replace("+", " ")

def f32bits(x):
    return struct.unpack("<I", struct.pack("<f", x))[0]

def fl(name):
    x = OPT[name]
    return (" " + x) if x else ""

WS_BYTES = 268435456
O_BYTES = 2 * 4 * 8 * 48 * 6 * 1024
PART_OFF = 32 << 20
STAMP_OFF = 200 << 20

sWAVE, sC, sJ, sBR, sHG, sH, sG = 3, 40, 41, 42, 43, 44, 45
SRD_WQ, SRD_X, SRD_K, SRD_V, SRD_WS, SRD_WO, SRD_OUT = 8, 12, 16, 20, 24, 48, 52
sT0, sT1, sT2, sT3 = 56, 57, 58, 59
sSLOT, sCNT, sOFF, sM0 = 60, 61, 62, 63
sSTAMP = 66


def stamp(a, k):
    if OPT["stamps"] and k < 16:
        a(f"s_memrealtime {s(sSTAMP + 2 * k, 2)}")
        a("s_waitcnt lgkmcnt(0)")


def stamps_init(a):
    if OPT["stamps"]:
        for k in range(32):
            a(f"s_mov_b32 s{sSTAMP + k}, 0")


def stamps_store(a, nwaves, base=0):
    if not OPT["stamps"]:
        return
    a(f"s_lshl_b32 s{sT0}, s2, 3")
    a(f"s_add_u32 s{sT0}, s{sT0}, s{sWAVE}")
    a(f"s_lshl_b32 s{sT0}, s{sT0}, 7")
    a(f"s_add_u32 s{sT0}, s{sT0}, {STAMP_OFF + base}")
    a("v_mov_b32 v1, 0")
    for k in range(0, 32, 4):
        for i in range(4):
            a(f"v_mov_b32 v{4 + i}, s{sSTAMP + k + i}")
        a(f"buffer_store_dwordx4 v[4:7], v1, {s(SRD_WS, 4)}, s{sT0} offen offset:{4 * k}")
        a("s_waitcnt vmcnt(0)")


def srd(a, r, lo, hi, nbytes):
    a(f"s_mov_b32 s{r}, s{lo}")
    a(f"s_and_b32 s{r + 1}, s{hi}, 0xffff")
    a(f"s_mov_b32 s{r + 2}, {nbytes}")
    a(f"s_mov_b32 s{r + 3}, 0x20000")


def prologue(a, nwg, endlabel):
    a(f"s_cmp_ge_u32 s2, {nwg}")
    a(f"s_cbranch_scc1 {endlabel}")
    a(f"s_and_b32 s{sC}, s2, 7")
    a(f"s_lshr_b32 s{sJ}, s2, 3")
    a(f"s_lshr_b32 s{sBR}, s{sC}, 2")
    a(f"s_and_b32 s{sHG}, s{sC}, 3")
    a(f"s_mul_i32 s4, s{sBR}, 40")
    a("s_add_u32 s6, s0, s4")
    a("s_addc_u32 s7, s1, 0")
    a("s_load_dwordx4 s[28:31], s[6:7], 0")
    a("s_load_dwordx4 s[32:35], s[6:7], 16")
    a("s_load_dwordx2 s[36:37], s[6:7], 32")
    a("s_load_dwordx2 s[38:39], s[0:1], 80")
    a("s_load_dwordx2 s[46:47], s[0:1], 96")
    a("v_lshrrev_b32 v1, 6, v0")
    a("v_and_b32 v0, 63, v0")
    stamps_init(a)
    a(f"v_readfirstlane_b32 s{sWAVE}, v1")
    a(f"s_and_b32 s{sT0}, s{sJ}, 7")
    a(f"s_lshl_b32 s{sH}, s{sHG}, 3")
    a(f"s_add_u32 s{sH}, s{sH}, s{sT0}")
    a(f"s_lshr_b32 s{sG}, s{sJ}, 3")
    a("s_waitcnt lgkmcnt(0)")
    srd(a, SRD_X, 28, 29, 768 * 640 * 2)
    srd(a, SRD_K, 30, 31, 16 * 32 * 48 * 192 * 2)
    srd(a, SRD_V, 32, 33, 16 * 32 * 48 * 192 * 2)
    srd(a, SRD_WQ, 34, 35, 640 * 6144 * 2)
    srd(a, SRD_WO, 36, 37, 6144 * 640 * 2)
    srd(a, SRD_OUT, 38, 39, 768 * 1280 * 2)
    srd(a, SRD_WS, 46, 47, WS_BYTES)


SLOT1 = 49152
XOFF = 24576
KBASE = 163840 - 4 * 19200
VBASE = 0
NST1 = 10


def slot1(st):
    return ((9 - st) % 3) * SLOT1


def p1_loader(a):
    vm = VmQueue(a)
    lq = LdsQueue(a)
    vWQ, vX, vKV, vKA, vVA = 2, 4, 6, 7, 8
    KR, VR = 100, 172
    sLW = sT3
    a(f"s_sub_u32 s{sLW}, s{sWAVE}, 4")
    a("v_lshrrev_b32 v10, 3, v0")
    a("v_and_b32 v11, 7, v0")
    a("v_lshrrev_b32 v12, 4, v0")
    a("v_and_b32 v13, 1, v12")
    a(f"s_lshl_b32 s{sT0}, s{sLW}, 4")
    a(f"s_mul_i32 s{sT1}, s{sH}, 384")
    a(f"s_mov_b32 s{sT2}, 12288")
    for n2 in range(2):
        a(f"v_add_u32 v14, s{sT0}, v10")
        if n2:
            a("v_add_u32 v14, 8, v14")
        a(f"v_mul_lo_u32 v14, v14, s{sT2}")
        a(f"v_or_b32 v15, {2 * n2}, v13")
        a("v_lshlrev_b32 v15, 1, v15")
        a("v_xor_b32 v15, v15, v11")
        a("v_lshlrev_b32 v15, 4, v15")
        a(f"v_add3_u32 v{vWQ + n2}, v14, v15, s{sT1}")
    a(f"s_mul_i32 s{sT0}, s{sG}, 192")
    a(f"s_mul_i32 s{sT1}, s{sLW}, 48")
    a(f"s_add_u32 s{sT0}, s{sT0}, s{sT1}")
    a(f"s_movk_i32 s{sT2}, 1280")
    for par in range(2):
        a(f"v_add_u32 v14, s{sT0}, v10")
        if par:
            a("v_add_u32 v14, 8, v14")
        a(f"v_mul_lo_u32 v14, v14, s{sT2}")
        a(f"v_or_b32 v15, {4 * par}, v12")
        a("v_xor_b32 v15, v15, v11")
        a(f"v_lshl_add_u32 v{vX + par}, v15, 4, v14")
    a(f"s_lshl_b32 s{sT0}, s{sG}, 2")
    a(f"s_add_u32 s{sT0}, s{sT0}, s{sLW}")
    a(f"s_lshl_b32 s{sT0}, s{sT0}, 5")
    a(f"s_add_u32 s{sT0}, s{sT0}, s{sH}")
    a(f"s_mul_i32 s{sT0}, s{sT0}, 18432")
    a("v_lshlrev_b32 v11, 4, v11")
    a("v_mul_u32_u24 v14, 384, v10")
    a(f"v_add3_u32 v{vKV}, v14, v11, s{sT0}")
    a(f"s_mul_i32 s{sT0}, s{sLW}, 19200")
    a(f"s_add_u32 s{sT0}, s{sT0}, {KBASE}")
    a("v_mul_u32_u24 v14, 400, v10")
    a(f"v_add3_u32 v{vKA}, v14, v11, s{sT0}")
    a(f"s_mul_i32 s{sT0}, s{sLW}, 19968")
    a(f"s_add_u32 s{sT0}, s{sT0}, {VBASE}")
    a("v_mul_u32_u24 v14, 416, v10")
    a(f"v_add3_u32 v{vVA}, v14, v11, s{sT0}")
    sMW, sMX = 64, 65
    a(f"s_lshl_b32 s{sMW}, s{sLW}, 11")
    a(f"s_mul_i32 s{sMX}, s{sLW}, 6144")
    a(f"s_add_u32 s{sMX}, s{sMX}, {XOFF}")

    def stage(st):
        base = slot1(st)
        a(f"s_mov_b32 s{sOFF}, {st * 786432}")
        for n2 in range(2):
            for cc in range(3):
                a(f"s_add_u32 m0, s{sMW}, {base + cc * 8192 + n2 * 1024 - cc * 128}")
                a("s_nop 0")
                vm.issue(f"buffer_load_dwordx4 v{vWQ + n2}, {s(SRD_WQ, 4)}, s{sOFF} offen offset:{cc * 128}{fl('nt_wq')} lds", ("S", st))
        for n in range(6):
            a(f"s_add_u32 m0, s{sMX}, {base + n * 1024}")
            a(f"s_mov_b32 s{sOFF}, {st * 128 + (n >> 1) * 20480}")
            vm.issue(f"buffer_load_dwordx4 v{vX + (n & 1)}, {s(SRD_X, 4)}, s{sOFF} offen{fl('nt_x')} lds", ("S", st))

    kv = [("K", aa, cc) for aa in range(6) for cc in range(3)] + [("V", aa, cc) for cc in range(3) for aa in range(6)]
    pos = [0]

    def kvload(n):
        for _ in range(n):
            if pos[0] >= len(kv):
                return
            kind, aa, cc = kv[pos[0]]
            pos[0] += 1
            reg = (KR if kind == "K" else VR) + (aa * 3 + cc) * 4
            a(f"s_mov_b32 s{sT0}, {(aa >> 1) * 6144}")
            vm.issue(f"buffer_load_dwordx4 {v(reg, 4)}, v{vKV}, {s(SRD_K if kind == 'K' else SRD_V, 4)}, s{sT0} offen offset:{(aa & 1) * 3072 + cc * 128}{fl('nt_kv')}", (kind, cc))

    kper = OPT["kper"]
    stage(0); stage(1); stage(2)
    kvload(kper)
    stamp(a, 1)
    for st in range(NST1):
        vm.need(("S", st))
        a("s_barrier")
        if st == 0:
            stamp(a, 2)
        if st == 5:
            stamp(a, 3)
        if 1 <= st <= 7:
            stage(st + 2)
        kvload(kper if st < 7 else 36)
        if st == 9:
            stamp(a, 4)
            vm.need(("K", 0), ("K", 1), ("K", 2))
            for aa in range(6):
                for cc in range(3):
                    lq.issue(f"ds_write_b128 v{vKA}, {v(KR + (aa * 3 + cc) * 4, 4)} offset:{aa * 3200 + cc * 128}")
            lq.drain()
    a("s_barrier")
    stamp(a, 5)
    for cc in range(3):
        vm.need(("V", cc))
        for aa in range(6):
            lq.issue(f"ds_write_b128 v{vVA}, {v(VR + (aa * 3 + cc) * 4, 4)} offset:{aa * 3328 + cc * 128}")
    lq.drain()
    stamp(a, 6)
    a("s_barrier")
    stamp(a, 7)


def p1_compute(a):
    lq = LdsQueue(a)
    ACC = 112
    XB = 88
    WB = 64
    vWA, vXA = 2, 6
    vKA, vVA, vOA = 8, 9, 10
    acc = lambda t, qt: ACC + (t * 3 + qt) * 4
    xb = lambda kk, qt: XB + (kk * 3 + qt) * 4
    wb = lambda u: WB + (u % 6) * 4
    a("v_and_b32 v12, 15, v0")
    a("v_lshrrev_b32 v13, 4, v0")
    a("v_bfe_u32 v14, v0, 2, 2")
    a("v_and_b32 v15, 3, v0")
    a("v_lshl_add_u32 v16, v13, 3, v14")
    a("v_lshlrev_b32 v16, 7, v16")
    a("v_lshl_add_u32 v16, v15, 3, v16")
    a("v_lshrrev_b32 v17, 1, v14")
    a("v_and_b32 v18, 1, v13")
    a("v_lshl_or_b32 v17, v18, 1, v17")
    for qd in range(4):
        a(f"v_xor_b32 v18, {qd}, v17")
        a(f"v_lshl_add_u32 v{vWA + qd}, v18, 5, v16")
    a(f"s_mul_i32 s{sT0}, s{sWAVE}, 6144")
    a(f"s_add_u32 s{sT0}, s{sT0}, {XOFF}")
    a("v_lshrrev_b32 v17, 1, v12")
    a("v_xor_b32 v17, v17, v13")
    a("v_lshlrev_b32 v17, 4, v17")
    a("v_lshl_add_u32 v17, v12, 7, v17")
    a(f"v_add_u32 v{vXA}, s{sT0}, v17")
    a(f"v_xor_b32 v{vXA + 1}, 64, v{vXA}")
    a(f"s_mul_i32 s{sT0}, s{sWAVE}, 19200")
    a(f"s_add_u32 s{sT0}, s{sT0}, {KBASE}")
    a("v_mul_u32_u24 v17, 400, v12")
    a("v_lshl_add_u32 v17, v13, 3, v17")
    a(f"v_add_u32 v{vKA}, s{sT0}, v17")
    a(f"s_mul_i32 s{sT0}, s{sWAVE}, 19968")
    a(f"s_add_u32 s{sT0}, s{sT0}, {VBASE}")
    a("v_lshl_add_u32 v17, v13, 2, v14")
    a("v_mul_u32_u24 v17, 416, v17")
    a("v_lshl_add_u32 v17, v15, 3, v17")
    a(f"v_add_u32 v{vVA}, s{sT0}, v17")
    a(f"v_lshlrev_b32 v{vOA}, 4, v0")
    for r in range(WB, 256):
        a(f"v_mov_b32 v{r}, 0")
    a(f"s_mov_b32 s{sSLOT}, 0")
    a(f"s_mov_b32 s{sOFF}, 0")
    a(f"s_mov_b32 s{sCNT}, 0")
    stamp(a, 1)

    def wread(u):
        kk, t = divmod(u, 12)
        return [(f"ds_read_b64_tr_b16 {v(wb(u) + 2 * hh, 2)}, v{vWA + (t & 3)} offset:{(t >> 2) * 8192 + kk * 4096 + hh * 512}", ("W", u)) for hh in range(2)]

    def xread(kk):
        return [(f"ds_read_b128 {v(xb(kk, qt), 4)}, v{vXA + kk} offset:{qt * 2048}", ("X", kk, qt)) for qt in range(3)]

    def mfmas(u):
        kk, t = divmod(u, 12)
        return [f"v_mfma_f32_16x16x32_bf16 {v(acc(t, qt), 4)}, {v(wb(u), 4)}, {v(xb(kk, qt), 4)}, {v(acc(t, qt), 4)}" for qt in range(3)]

    def tstep(u, reads, wait=True):
        kk, t = divmod(u, 12)
        ms = mfmas(u)
        reads = list(reads)
        for qt in range(3):
            if wait:
                lq.need(("W", u), ("X", kk, qt))
            a(ms[qt])
            n = (len(reads) + (2 - qt)) // (3 - qt)
            for _ in range(n):
                txt, tag = reads.pop(0)
                lq.issue(txt, tag)

    loop = a.uid("p1loop")
    a.label(loop)
    a("s_barrier")
    for r in range(6):
        a(f"v_add_u32 v{vWA + r}, s{sOFF}, v{vWA + r}")
    x0 = xread(0)
    tstep(21, [x0[0]] + wread(0) + [x0[1], x0[2]] + wread(1), wait=False)
    tstep(22, wread(2) + wread(3), wait=False)
    tstep(23, wread(4), wait=False)
    a(f"s_cmp_eq_u32 s{sSLOT}, 0")
    a(f"s_mov_b32 s{sOFF}, {(-SLOT1) & 0xffffffff}")
    a(f"s_cmov_b32 s{sOFF}, {2 * SLOT1}")
    a(f"s_add_u32 s{sSLOT}, s{sSLOT}, s{sOFF}")
    for u in range(21):
        reads = wread(u + 5) if u + 5 < 24 else []
        if u == 3:
            reads = reads + xread(1)
        tstep(u, reads)
    lq.drain(force=True)
    a(f"s_add_u32 s{sCNT}, s{sCNT}, 1")
    a(f"s_cmp_lt_u32 s{sCNT}, {NST1}")
    a(f"s_cbranch_scc1 {loop}")
    a("s_barrier")
    stamp(a, 5)
    for u in (21, 22, 23):
        tstep(u, [], wait=False)

    SB = 64
    S = lambda kt, qt: SB + (qt * 3 + kt) * 4
    qf = lambda qt, p: acc(2 * p, qt)
    kf = lambda kt, p: acc(2 * p + 1, kt)

    def cvtq(p):
        for qt in range(3):
            x, y = acc(2 * p, qt), acc(2 * p + 1, qt)
            a(f"v_cvt_pk_bf16_f32 v{x}, v{x}, v{x + 1}")
            a(f"v_cvt_pk_bf16_f32 v{x + 1}, v{x + 2}, v{x + 3}")
            a(f"v_cvt_pk_bf16_f32 v{x + 2}, v{y}, v{y + 1}")
            a(f"v_cvt_pk_bf16_f32 v{x + 3}, v{y + 2}, v{y + 3}")

    def kreads(p):
        for kt in range(3):
            for hh in range(2):
                lq.issue(f"ds_read_b64 {v(kf(kt, p) + 2 * hh, 2)}, v{vKA} offset:{kt * 6400 + 64 * p + 32 * hh}", ("K", kt, p))

    def smf(p):
        for kt in range(3):
            lq.need(("K", kt, p))
            for qt in range(3):
                c = "0" if p == 0 else v(S(kt, qt), 4)
                a(f"v_mfma_f32_16x16x32_bf16 {v(S(kt, qt), 4)}, {v(kf(kt, p), 4)}, {v(qf(qt, p), 4)}, {c}")

    cvtq(0); kreads(0)
    cvtq(1); kreads(1)
    for p in range(6):
        if p + 2 < 6:
            if p + 2 == 5:
                a("s_nop 7")
            cvtq(p + 2); kreads(p + 2)
        smf(p)
    a("s_nop 7")
    sCF = sT1
    a(f"s_mov_b32 s{sCF}, {f32bits(math.log2(math.e) / math.sqrt(192.0)):#x}")
    streams = []
    for qt in range(3):
        b = S(0, qt)
        m, tmp = 100 + 2 * qt, 101 + 2 * qt
        o = [f"v_max3_f32 v{m}, v{b}, v{b + 1}, v{b + 2}"]
        for k in range(3, 11, 2):
            o.append(f"v_max3_f32 v{m}, v{m}, v{b + k}, v{b + k + 1}")
        o.append(f"v_max_f32 v{m}, v{m}, v{b + 11}")
        for sw in ("v_permlane16_swap_b32", "v_permlane32_swap_b32"):
            o.append(f"v_mov_b32 v{tmp}, v{m}")
            o.append(f"{sw} v{m}, v{tmp}")
            o.append(f"v_max_f32 v{m}, v{m}, v{tmp}")
        o.append(f"v_mul_f32 v{m}, s{sCF}, v{m}")
        for k in range(12):
            o.append(f"v_fma_f32 v{b + k}, v{b + k}, s{sCF}, -v{m}")
        for k in range(12):
            o.append(f"v_exp_f32 v{b + k}, v{b + k}")
        o.append(f"v_add_f32 v{m}, v{b}, v{b + 1}")
        for k in range(2, 12):
            o.append(f"v_add_f32 v{m}, v{m}, v{b + k}")
        for sw in ("v_permlane16_swap_b32", "v_permlane32_swap_b32"):
            o.append(f"v_mov_b32 v{tmp}, v{m}")
            o.append(f"{sw} v{m}, v{tmp}")
            o.append(f"v_add_f32 v{m}, v{m}, v{tmp}")
        o.append(f"v_rcp_f32 v{m}, v{m}")
        for k in range(12):
            o.append(f"v_mul_f32 v{b + k}, v{b + k}, v{m}")
        for k in range(6):
            o.append(f"v_cvt_pk_bf16_f32 v{b + k}, v{b + 2 * k}, v{b + 2 * k + 1}")
        streams.append(o)
    for k in range(len(streams[0])):
        for qt in range(3):
            a(streams[qt][k])
    pf01 = lambda qt: S(0, qt)
    pf2 = lambda qt: S(0, qt) + 4
    stamp(a, 6)
    a("s_barrier")
    stamp(a, 7)
    a(f"s_lshl_b32 s{sT0}, s{sC}, 3")
    a(f"s_lshl_b32 s{sT1}, s{sG}, 1")
    a(f"s_add_u32 s{sT0}, s{sT0}, s{sT1}")
    a(f"s_lshr_b32 s{sT1}, s{sWAVE}, 1")
    a(f"s_add_u32 s{sT0}, s{sT0}, s{sT1}")
    a(f"s_mul_i32 s{sT0}, s{sT0}, 288")
    a(f"s_and_b32 s{sT1}, s{sJ}, 7")
    a(f"s_mul_i32 s{sT1}, s{sT1}, 36")
    a(f"s_add_u32 s{sT0}, s{sT0}, s{sT1}")
    a(f"s_and_b32 s{sT1}, s{sWAVE}, 1")
    a(f"s_mul_i32 s{sT1}, s{sT1}, 3")
    a(f"s_add_u32 s{sT0}, s{sT0}, s{sT1}")
    a(f"s_lshl_b32 s{sOFF}, s{sT0}, 10")
    VF = 112
    OA = 144
    OF = 192
    vf = lambda t: VF + (t % 4) * 8
    oa = lambda t, qt: OA + ((t % 4) * 3 + qt) * 4

    def vreads(t):
        lq.issue(f"ds_read_b64_tr_b16 {v(vf(t), 2)}, v{vVA} offset:{32 * t}", ("V", t))
        lq.issue(f"ds_read_b64_tr_b16 {v(vf(t) + 2, 2)}, v{vVA} offset:{16 * 416 + 32 * t}", ("V", t))
        lq.issue(f"ds_read_b64_tr_b16 {v(vf(t) + 4, 2)}, v{vVA} offset:{32 * 416 + 32 * t}", ("V", t))

    def pv(t):
        lq.need(("V", t))
        for qt in range(3):
            a(f"v_mfma_f32_16x16x32_bf16 {v(oa(t, qt), 4)}, {v(vf(t), 4)}, {v(pf01(qt), 4)}, 0")
        for qt in range(3):
            a(f"v_mfma_f32_16x16x16_bf16 {v(oa(t, qt), 4)}, {v(vf(t) + 4, 2)}, {v(pf2(qt), 2)}, {v(oa(t, qt), 4)}")

    def ostore(p):
        for qt in range(3):
            x, y = oa(2 * p, qt), oa(2 * p + 1, qt)
            d = OF + ((p % 2) * 3 + qt) * 4
            a(f"v_cvt_pk_bf16_f32 v{d}, v{x}, v{x + 1}")
            a(f"v_cvt_pk_bf16_f32 v{d + 1}, v{x + 2}, v{x + 3}")
            a(f"v_cvt_pk_bf16_f32 v{d + 2}, v{y}, v{y + 1}")
            a(f"v_cvt_pk_bf16_f32 v{d + 3}, v{y + 2}, v{y + 3}")
            a(f"buffer_store_dwordx4 {v(d, 4)}, v{vOA}, {s(SRD_WS, 4)}, s{sOFF} offen offset:{qt * 1024}{fl('o_store')}")
        a(f"s_add_u32 s{sOFF}, s{sOFF}, 6144")

    for t in range(3):
        vreads(t)
    for t in range(12):
        pv(t)
        if t + 3 < 12:
            vreads(t + 3)
        if t >= 2 and t % 2 == 0:
            a("s_nop 1")
            ostore(t // 2 - 1)
    a("s_nop 7")
    ostore(5)
    stamp(a, 8)
    if OPT["stamps"]:
        a("s_waitcnt vmcnt(0)")
        stamp(a, 9)


def kernel1(a, name):
    a.raw(f".globl {name}\n.p2align 8\n.type {name},@function\n{name}:")
    end = a.uid("k1end")
    prologue(a, 256, end)
    stamp(a, 0)
    ld = a.uid("k1load")
    a(f"s_cmp_ge_u32 s{sWAVE}, 4")
    a(f"s_cbranch_scc1 {ld}")
    p1_compute(a)
    stamps_store(a, 8)
    a("s_endpgm")
    a.label(ld)
    p1_loader(a)
    stamps_store(a, 8)
    a.label(end)
    a("s_endpgm")


SLOT2 = 32768
WOFF = 12288
NST2 = 24


def p2_loader(a):
    R = OPT["R2"]
    vO, vW = 2, 3
    sLW = sT3
    sOO, sWO_, sMO, sMW = 64, 65, 98, 99
    a(f"s_sub_u32 s{sLW}, s{sWAVE}, 4")
    a(f"s_lshl_b32 s{sT0}, s{sC}, 3")
    a(f"s_lshr_b32 s{sT1}, s{sJ}, 2")
    a(f"s_add_u32 s{sT0}, s{sT0}, s{sT1}")
    a(f"s_mul_i32 s{sOO}, s{sT0}, {288 * 1024}")
    a(f"s_mul_i32 s{sMO}, s{sLW}, 3072")
    a(f"v_lshlrev_b32 v{vO}, 4, v0")
    a(f"v_add_u32 v{vO}, s{sMO}, v{vO}")
    a(f"s_and_b32 s{sT0}, s{sJ}, 3")
    a(f"s_mul_i32 s{sT0}, s{sT0}, 320")
    a(f"s_mul_i32 s{sT1}, s{sLW}, {16 * 1280}")
    a(f"s_add_u32 s{sT0}, s{sT0}, s{sT1}")
    a(f"s_movk_i32 s{sT1}, 3277")
    for n in range(5):
        a(f"v_add_u32 v10, {64 * n}, v0")
        a(f"v_mul_lo_u32 v11, v10, s{sT1}")
        a("v_lshrrev_b32 v11, 16, v11")
        a("v_mul_u32_u24 v12, 20, v11")
        a("v_sub_u32 v12, v10, v12")
        a("v_bfe_u32 v13, v11, 2, 1")
        a("v_lshlrev_b32 v13, 1, v13")
        a("v_xor_b32 v12, v12, v13")
        a("v_mul_u32_u24 v11, 1280, v11")
        a("v_lshl_add_u32 v11, v12, 4, v11")
        a(f"v_add_u32 v{vW + n}, s{sT0}, v11")
    a(f"s_mul_i32 s{sWO_}, s{sHG}, {1536 * 1280}")
    a(f"s_mul_i32 s{sMW}, s{sLW}, 5120")
    a(f"s_add_u32 s{sMW}, s{sMW}, {WOFF}")
    a(f"s_mov_b32 s{sSLOT}, 0")

    def stage():
        a(f"s_add_u32 m0, s{sMO}, s{sSLOT}")
        a(f"s_add_u32 s{sT0}, s{sMW}, s{sSLOT}")
        for n in range(3):
            a(f"buffer_load_dwordx4 v{vO}, {s(SRD_WS, 4)}, s{sOO} offen offset:{n * 1024} lds")
        for n in range(5):
            a(f"s_add_u32 m0, s{sT0}, {n * 1024}")
            a("s_nop 0")
            a(f"buffer_load_dwordx4 v{vW + n}, {s(SRD_WO, 4)}, s{sWO_} offen{fl('nt_wo')} lds")
        a(f"s_add_u32 s{sOO}, s{sOO}, 12288")
        a(f"s_add_u32 s{sWO_}, s{sWO_}, {64 * 1280}")
        a(f"s_add_u32 s{sSLOT}, s{sSLOT}, {SLOT2}")
        a(f"s_cmp_eq_u32 s{sSLOT}, {R * SLOT2}")
        a(f"s_cselect_b32 s{sSLOT}, 0, s{sSLOT}")

    for _ in range(R):
        stage()
    stamp(a, 1)
    a(f"s_waitcnt vmcnt({8 * (R - 1)})")
    a("s_barrier")
    stamp(a, 2)
    a(f"s_mov_b32 s{sCNT}, 1")
    loop = a.uid("p2ld")
    a.label(loop)
    a(f"s_waitcnt vmcnt({8 * (R - 2)})")
    a("s_barrier")
    stage()
    a(f"s_add_u32 s{sCNT}, s{sCNT}, 1")
    a(f"s_cmp_le_u32 s{sCNT}, {NST2 - R}")
    a(f"s_cbranch_scc1 {loop}")
    for st in range(NST2 - R + 1, NST2):
        a(f"s_waitcnt vmcnt({8 * (NST2 - 1 - st)})")
        a("s_barrier")
    stamp(a, 3)


def p2_compute(a):
    R = OPT["R2"]
    lq = LdsQueue(a)
    ACC = 192
    FB = 64
    vOA, vWA, vWB = 2, 3, 4
    acc = lambda tt, qt: ACC + (tt * 3 + qt) * 4
    of = lambda kk, qt: FB + kk * 32 + qt * 4
    wf = lambda kk, tt: FB + kk * 32 + 12 + tt * 4
    sMH, sNH = 64, 65
    a(f"s_and_b32 s{sMH}, s{sWAVE}, 1")
    a(f"s_lshr_b32 s{sNH}, s{sWAVE}, 1")
    a("v_and_b32 v12, 15, v0")
    a("v_lshrrev_b32 v13, 4, v0")
    a("v_bfe_u32 v14, v0, 2, 2")
    a("v_and_b32 v15, 3, v0")
    a(f"s_mul_i32 s{sT0}, s{sMH}, 3072")
    a(f"v_lshlrev_b32 v{vOA}, 4, v0")
    a(f"v_add_u32 v{vOA}, s{sT0}, v{vOA}")
    a("v_lshl_add_u32 v16, v13, 2, v14")
    a("v_mul_u32_u24 v16, 320, v16")
    a("v_lshl_add_u32 v16, v15, 3, v16")
    a(f"v_add_u32 v16, {WOFF}, v16")
    a("v_and_b32 v17, 1, v13")
    a("v_lshlrev_b32 v17, 5, v17")
    a(f"s_mul_i32 s{sT0}, s{sNH}, 160")
    a(f"v_xor_b32 v18, s{sT0}, v17")
    a(f"v_add_u32 v{vWA}, v16, v18")
    a(f"s_add_u32 s{sT0}, s{sT0}, 32")
    a(f"v_xor_b32 v18, s{sT0}, v17")
    a(f"v_add3_u32 v{vWB}, v16, v18, -16")
    a(f"v_add_u32 v{vWB}, -16, v{vWB}")
    for r in range(FB, 256):
        a(f"v_mov_b32 v{r}, 0")
    a(f"s_mov_b32 s{sSLOT}, 0")
    a(f"s_mov_b32 s{sOFF}, 0")
    a(f"s_mov_b32 s{sCNT}, 0")
    stamp(a, 1)

    def reads(kk):
        o = [(f"ds_read_b128 {v(of(kk, qt), 4)}, v{vOA} offset:{(kk * 6 + qt) * 1024}", ("O", kk, qt)) for qt in range(3)]
        w = []
        for tt in range(5):
            for hh in range(2):
                w.append((f"ds_read_b64_tr_b16 {v(wf(kk, tt) + 2 * hh, 2)}, v{vWA + (tt & 1)} offset:{kk * 10240 + hh * 5120 + 32 * tt}", ("W", kk, tt)))
        return [o[0], w[0], w[1], o[1], o[2]] + w[2:]

    def half(kk, rd, wait):
        rd = list(rd)
        for tt in range(5):
            for qt in range(3):
                if wait:
                    lq.need(("O", kk, qt), ("W", kk, tt))
                a(f"v_mfma_f32_16x16x32_bf16 {v(acc(tt, qt), 4)}, {v(wf(kk, tt), 4)}, {v(of(kk, qt), 4)}, {v(acc(tt, qt), 4)}")
                for _ in range(2):
                    if rd:
                        txt, tag = rd.pop(0)
                        lq.issue(txt, tag)

    loop = a.uid("p2loop")
    a.label(loop)
    a("s_barrier")
    for r in range(3):
        a(f"v_add_u32 v{vOA + r}, s{sOFF}, v{vOA + r}")
    half(1, reads(0), False)
    a(f"s_add_u32 s{sSLOT}, s{sSLOT}, {SLOT2}")
    a(f"s_cmp_eq_u32 s{sSLOT}, {R * SLOT2}")
    a(f"s_mov_b32 s{sOFF}, {SLOT2}")
    a(f"s_cmov_b32 s{sOFF}, {(-(R - 1) * SLOT2) & 0xffffffff}")
    a(f"s_cselect_b32 s{sSLOT}, 0, s{sSLOT}")
    half(0, reads(1), True)
    lq.drain(force=True)
    a(f"s_add_u32 s{sCNT}, s{sCNT}, 1")
    a(f"s_cmp_lt_u32 s{sCNT}, {NST2}")
    a(f"s_cbranch_scc1 {loop}")
    half(1, [], False)
    stamp(a, 3)
    a(f"s_lshl_b32 s{sT0}, s{sHG}, 1")
    a(f"s_add_u32 s{sT0}, s{sT0}, s{sBR}")
    a(f"s_mul_i32 s{sT0}, s{sT0}, 768")
    a(f"s_lshr_b32 s{sT1}, s{sJ}, 2")
    a(f"s_mul_i32 s{sT1}, s{sT1}, 96")
    a(f"s_add_u32 s{sT0}, s{sT0}, s{sT1}")
    a(f"s_mul_i32 s{sT1}, s{sMH}, 48")
    a(f"s_add_u32 s{sT0}, s{sT0}, s{sT1}")
    a(f"s_mul_i32 s{sT0}, s{sT0}, 2560")
    a(f"s_and_b32 s{sT1}, s{sJ}, 3")
    a(f"s_mul_i32 s{sT1}, s{sT1}, 640")
    a(f"s_add_u32 s{sT0}, s{sT0}, s{sT1}")
    a(f"s_mul_i32 s{sT1}, s{sNH}, 320")
    a(f"s_add_u32 s{sT0}, s{sT0}, s{sT1}")
    a(f"s_add_u32 s{sOFF}, s{sT0}, {PART_OFF}")
    a("v_mul_u32_u24 v16, 2560, v12")
    a("v_lshl_add_u32 v16, v13, 4, v16")
    a("s_nop 7")
    for qt in range(3):
        for tt in range(5):
            a(f"buffer_store_dwordx4 {v(acc(tt, qt), 4)}, v16, {s(SRD_WS, 4)}, s{sOFF} offen offset:{64 * tt}{fl('part_store')}")
        a(f"s_add_u32 s{sOFF}, s{sOFF}, {16 * 2560}")
    if OPT["stamps"]:
        a("s_waitcnt vmcnt(0)")
        stamp(a, 4)


def kernel2(a, name):
    a.raw(f".globl {name}\n.p2align 8\n.type {name},@function\n{name}:")
    end = a.uid("k2end")
    prologue(a, 256, end)
    stamp(a, 0)
    ld = a.uid("k2load")
    a(f"s_cmp_ge_u32 s{sWAVE}, 4")
    a(f"s_cbranch_scc1 {ld}")
    p2_compute(a)
    if OPT["stamps"] == 2:
        stamps_store(a, 8)
    a("s_endpgm")
    a.label(ld)
    p2_loader(a)
    if OPT["stamps"] == 2:
        stamps_store(a, 8)
    a.label(end)
    a("s_endpgm")


def kernel3(a, name):
    a.raw(f".globl {name}\n.p2align 8\n.type {name},@function\n{name}:")
    end = a.uid("k3end")
    a("s_cmp_ge_u32 s2, 480")
    a(f"s_cbranch_scc1 {end}")
    a("s_load_dwordx2 s[38:39], s[0:1], 80")
    a("s_load_dwordx2 s[46:47], s[0:1], 96")
    a("s_lshl_b32 s3, s2, 8")
    a("v_add_u32 v1, s3, v0")
    a("s_mov_b32 s4, 53687092")
    a("v_mul_hi_u32 v2, v1, s4")
    a("v_mul_u32_u24 v3, 80, v2")
    a("v_sub_u32 v3, v1, v3")
    a("v_cmp_le_u32 vcc, 768, v2")
    a("v_lshlrev_b32 v4, 5, v1")
    a("s_nop 0")
    a("v_cndmask_b32 v5, 0, 1, vcc")
    a("v_mul_u32_u24 v6, 768, v5")
    a("v_sub_u32 v6, v2, v6")
    a("v_mul_u32_u24 v6, 2560, v6")
    a("v_mul_u32_u24 v5, 1280, v5")
    a("v_lshlrev_b32 v3, 4, v3")
    a("v_add3_u32 v6, v6, v5, v3")
    a("s_waitcnt lgkmcnt(0)")
    srd(a, SRD_OUT, 38, 39, 768 * 1280 * 2)
    srd(a, SRD_WS, 46, 47, WS_BYTES)
    for hg in range(4):
        a(f"s_mov_b32 s{4 + hg}, {PART_OFF + hg * 2 * 768 * 2560}")
        a(f"buffer_load_dwordx4 {v(8 + 8 * hg, 4)}, v4, {s(SRD_WS, 4)}, s{4 + hg} offen")
        a(f"buffer_load_dwordx4 {v(12 + 8 * hg, 4)}, v4, {s(SRD_WS, 4)}, s{4 + hg} offen offset:16")
    a("s_waitcnt vmcnt(4)")
    for k in range(8):
        a(f"v_add_f32 v{8 + k}, v{8 + k}, v{16 + k}")
    a("s_waitcnt vmcnt(0)")
    for k in range(8):
        a(f"v_add_f32 v{24 + k}, v{24 + k}, v{32 + k}")
    for k in range(8):
        a(f"v_add_f32 v{8 + k}, v{8 + k}, v{24 + k}")
    for k in range(4):
        a(f"v_cvt_pk_bf16_f32 v{8 + k}, v{8 + 2 * k}, v{9 + 2 * k}")
    a(f"buffer_store_dwordx4 v[8:11], v6, {s(SRD_OUT, 4)}, 0 offen")
    a.label(end)
    a("s_endpgm")


def main():
    a = Asm()
    hdr = open("cdna_kernels/" + NAME + ".s.ref").read().split("; Override")[0]
    head = hdr
    head += f"; @launch kernel={NAME}_kernel grid=(256,1,1) block=(512,1,1) lds=163840\n"
    if not OPT["k1only"]:
        head += f"; @launch kernel=oproj_kernel grid=(256,1,1) block=(512,1,1) lds={OPT['R2'] * SLOT2}\n"
        head += f"; @launch kernel=reduce_kernel grid=(480,1,1) block=(256,1,1) lds=0\n"
    head += '.amdgcn_target "amdgcn-amd-amdhsa--gfx950"\n.text\n'
    kernel1(a, NAME + "_kernel")
    kernel2(a, "oproj_kernel")
    kernel3(a, "reduce_kernel")
    tail = '.section .rodata,"a"\n.p2align 6\n' + descriptor(NAME + "_kernel") + ".p2align 6\n" + descriptor("oproj_kernel") + ".p2align 6\n" + descriptor("reduce_kernel", vgpr=48, accum=48)
    open(sys.argv[1], "w").write(head + a.text() + tail)


main()
```
